```python
import torch

def _softmax(x, axis=-1):
    return torch.softmax(x, dim=axis)
def _gelu(x):
    return torch.nn.functional.gelu(x, approximate="tanh")
def _silu(x):
    return torch.nn.functional.silu(x)
def _sigmoid(x):
    return torch.sigmoid(x)
def _layernorm(x, axis=-1, eps=1e-5):
    m = x.mean(dim=axis, keepdim=True)
    v = x.var(dim=axis, keepdim=True, unbiased=False)
    return (x - m) / torch.sqrt(v + eps)
def _scatter_add(tgt, idx, src, axis=0):
    return tgt.clone().index_add_(axis, idx, src)
def _segment_sum(src, seg, n):
    out = torch.zeros((n,) + src.shape[1:], dtype=src.dtype)
    return out.index_add_(0, seg, src)
def _pad(x, pw):
    flat = tuple(v for pair in reversed(pw) for v in pair)
    return torch.nn.functional.pad(x, flat)

kernel_name = 'recurrent_scan__gqa_block_cached__glu_gated_geglu__decode'

def setup_inputs():

    _w = (lambda a: (lambda t: t.to(torch.bfloat16) if t.is_floating_point() else t)(torch.as_tensor(a)))
    def _A_setup():
        B, Sq, D = 1, 1, 576
        Hq, Hkv, Sk, Dh = 32, 16, 65536, 128
        assert Hq % Hkv == 0, (Hq, Hkv)
        return {
            "x": _w((lambda *s: torch.randn(*s, dtype=torch.bfloat16) * 0.4)(B, Sq, D)),
            "k_cache": _w((lambda *s: torch.randn(*s, dtype=torch.bfloat16) * 1.6)(B, Hkv, Sk, Dh)),
            "v_cache": _w((lambda *s: torch.randn(*s, dtype=torch.bfloat16) * 1.6)(B, Hkv, Sk, Dh)),
            "wq": _w((lambda *s: torch.randn(*s, dtype=torch.bfloat16) * 1.6)(D, Hq * Dh) * (D ** -0.5)),
            "wo": _w((lambda *s: torch.randn(*s, dtype=torch.bfloat16) * 1.6)(Hq * Dh, D) * ((Hq * Dh) ** -0.5)),
        }
    _A_in = _A_setup()

    def _B_setup():
        B, S, Dm, Df = 1, 1, 576, 4608
        return {
            "x": _w((lambda *s: torch.randn(*s, dtype=torch.bfloat16) * 0.4)(B, S, Dm)),
            "w_gate": _w((lambda *s: torch.randn(*s, dtype=torch.bfloat16) * 1.6)(Dm, Df) * (Dm ** -0.5)),
            "w_up": _w((lambda *s: torch.randn(*s, dtype=torch.bfloat16) * 1.6)(Dm, Df) * (Dm ** -0.5)),
            "w_down": _w((lambda *s: torch.randn(*s, dtype=torch.bfloat16) * 1.6)(Df, Dm) * (Df ** -0.5)),
        }
    _B_in = _B_setup()

    return {
        "A_x": _A_in["x"],
        "A_k_cache": _A_in["k_cache"],
        "A_v_cache": _A_in["v_cache"],
        "A_wq": _A_in["wq"],
        "A_wo": _A_in["wo"],
        "B_x": _B_in["x"],
        "B_w_gate": _B_in["w_gate"],
        "B_w_up": _B_in["w_up"],
        "B_w_down": _B_in["w_down"],
    }

def reference(A_x, A_k_cache, A_v_cache, A_wq, A_wo, B_x, B_w_gate, B_w_up, B_w_down):
    def _A_ref(x, k_cache, v_cache, wq, wo):
        B, Sq, D = x.shape
        Hq, Dh = 32, 128
        Hkv = k_cache.shape[1]
        rep = Hq // Hkv
        q = (lambda x, *d: x.permute(*d))((x @ wq).reshape(B, Sq, Hq, Dh), 0, 2, 1, 3)
        k = (lambda x, n, axis: torch.repeat_interleave(x, n, dim=axis))(k_cache, rep, axis=1)
        v = (lambda x, n, axis: torch.repeat_interleave(x, n, dim=axis))(v_cache, rep, axis=1)
        scores = torch.einsum("bhqd,bhkd->bhqk", q, k) * (Dh ** -0.5)
        p = _softmax(scores, axis=-1)
        o = torch.einsum("bhqk,bhkd->bhqd", p, v)
        return (lambda x, *d: x.permute(*d))(o, 0, 2, 1, 3).reshape(B, Sq, Hq * Dh) @ wo

    def _B_ref(x, w_gate, w_up, w_down):
        g = torch.einsum("bsd,df->bsf", x, w_gate)
        u = torch.einsum("bsd,df->bsf", x, w_up)
        h = _gelu(g) * u
        return torch.einsum("bsf,fd->bsd", h, w_down)

    x = A_x
    xn = _layernorm(x, axis=-1)
    s = _A_ref(xn, A_k_cache, A_v_cache, A_wq, A_wo)
    g = _silu(_B_ref(xn, B_w_gate, B_w_up, B_w_down))
    return x + s * g
```

```python
import sys

NSPLIT = 64
NW2 = 4
KEYS_WAVE = 65536 // NSPLIT // NW2
NBATCH = KEYS_WAVE // 32
NWG2 = 16 * NSPLIT
NT = " nt"

WS_Q = 0
WS_H = 0x4000
WS_PO = 0x10000
WS_PML = 0x300000
WS_P3 = 0x400000

C_SCALE = 1.4426950408889634 / (128.0 ** 0.5)

import struct
def f32bits(x):
    return "0x%08x" % struct.unpack("<I", struct.pack("<f", x))[0]

out = []
def emit(s=""):
    out.append(s)
def I(s):
    out.append("    " + s)
def L(s):
    out.append(s + ":")
def nop(n):
    I("s_nop %d" % (n - 1))

DPP = "row_mask:0xf bank_mask:0xf"
def row_allreduce(op, regs):
    for ctl in ("quad_perm:[1,0,3,2]", "quad_perm:[2,3,0,1]", "row_half_mirror", "row_mirror"):
        for r in regs:
            I("v_%s_f32_dpp v%d, v%d, v%d %s %s" % (op, r, r, r, ctl, DPP))
        if len(regs) < 3:
            nop(2)

def kernel_head(name):
    emit(".p2align 8")
    emit(".type %s,@function" % name)
    emit("%s:" % name)

def kernel_desc(name, vgpr, sgpr=96):
    acc = (vgpr + 3) // 4 * 4
    emit(".amdhsa_kernel %s" % name)
    emit("  .amdhsa_next_free_vgpr %d" % vgpr)
    emit("  .amdhsa_next_free_sgpr %d" % sgpr)
    emit("  .amdhsa_accum_offset %d" % acc)
    emit("  .amdhsa_group_segment_fixed_size 0")
    emit("  .amdhsa_kernarg_size 96")
    emit("  .amdhsa_user_sgpr_count 2")
    emit("  .amdhsa_user_sgpr_kernarg_segment_ptr 1")
    emit("  .amdhsa_system_sgpr_workgroup_id_x 1")
    emit(".end_amdhsa_kernel")

HEADER = """; Kernarg layout for this problem (96 bytes, ptrs only, base s[0:1]):
;   offset   0: d_in[0] A_x  shape=(1, 1, 576) dtype=bfloat16 strides=(1152, 1152, 2) contiguous=True
;   offset   8: d_in[1] A_k_cache  shape=(1, 16, 65536, 128) dtype=bfloat16 strides=(268435456, 16777216, 256, 2) contiguous=True
;   offset  16: d_in[2] A_v_cache  shape=(1, 16, 65536, 128) dtype=bfloat16 strides=(268435456, 16777216, 256, 2) contiguous=True
;   offset  24: d_in[3] A_wq  shape=(576, 4096) dtype=bfloat16 strides=(8192, 2) contiguous=True
;   offset  32: d_in[4] A_wo  shape=(4096, 576) dtype=bfloat16 strides=(1152, 2) contiguous=True
;   offset  40: d_in[5] B_x  shape=(1, 1, 576) dtype=bfloat16 strides=(1152, 1152, 2) contiguous=True
;   offset  48: d_in[6] B_w_gate  shape=(576, 4608) dtype=bfloat16 strides=(9216, 2) contiguous=True
;   offset  56: d_in[7] B_w_up  shape=(576, 4608) dtype=bfloat16 strides=(9216, 2) contiguous=True
;   offset  64: d_in[8] B_w_down  shape=(4608, 576) dtype=bfloat16 strides=(1152, 2) contiguous=True
;   offset  72: d_out     shape=(1, 1, 576) dtype=bfloat16 (2 bytes/elem)
;   offset  80: d_debug   256 bytes
;   offset  88: d_ws      1073741824 bytes workspace
; @launch kernel=proj_kernel grid=(208,1,1) block=(256,1,1) lds=12288
; @launch kernel=attn_kernel grid=(%d,1,1) block=(%d,1,1) lds=16640
; @launch kernel=out_kernel grid=(272,1,1) block=(288,1,1) lds=11264
; @launch kernel=fin_kernel grid=(9,1,1) block=(256,1,1) lds=2048
""" % (NWG2, NW2 * 64)

def gen_k1():
    name = "proj_kernel"
    kernel_head(name)
    I("s_cmp_ge_u32 s2, 208")
    I("s_cbranch_scc1 K1_exit")
    I("s_load_dwordx2 s[4:5], s[0:1], 0")
    I("s_load_dwordx2 s[6:7], s[0:1], 24")
    I("s_load_dwordx4 s[8:11], s[0:1], 48")
    I("s_load_dwordx2 s[12:13], s[0:1], 88")
    I("v_and_b32 v1, 7, v0")
    I("v_lshrrev_b32 v2, 3, v0")
    I("v_and_b32 v3, 63, v0")
    I("v_lshlrev_b32 v4, 4, v3")
    I("s_waitcnt lgkmcnt(0)")
    I("s_mov_b32 s16, s4")
    I("s_mov_b32 s17, s5")
    I("s_mov_b32 s18, 1152")
    I("s_mov_b32 s19, 0x00020000")
    I("buffer_load_dwordx4 v[8:11], v4, s[16:19], 0 offen")
    I("buffer_load_dwordx4 v[12:15], v4, s[16:19], 0 offen offset:1024")
    I("s_cmp_ge_u32 s2, 64")
    I("s_cbranch_scc1 K1_mlp_addr")
    I("s_lshl_b32 s20, s2, 7")
    I("s_add_u32 s22, s6, s20")
    I("s_addc_u32 s23, s7, 0")
    I("v_lshlrev_b32 v5, 4, v1")
    I("v_lshl_add_u32 v5, v2, 13, v5")
    I("s_mov_b32 s24, %d" % (32 * 8192))
    I("v_mov_b32 v6, s22")
    I("v_mov_b32 v7, s23")
    I("s_branch K1_addr_done")
    L("K1_mlp_addr")
    I("s_sub_u32 s20, s2, 64")
    I("s_lshl_b32 s20, s20, 6")
    I("v_cmp_gt_u32 vcc, 4, v1")
    I("v_mov_b32 v6, s10")
    I("v_mov_b32 v7, s11")
    I("v_mov_b32 v16, s8")
    I("v_mov_b32 v17, s9")
    I("v_cndmask_b32 v6, v6, v16, vcc")
    I("v_cndmask_b32 v7, v7, v17, vcc")
    I("v_and_b32 v5, 3, v1")
    I("v_lshlrev_b32 v5, 4, v5")
    I("v_mul_u32_u24 v16, 9216, v2")
    I("v_add_u32 v5, v5, v16")
    I("v_add_u32 v5, s20, v5")
    I("s_mov_b32 s24, %d" % (32 * 9216))
    L("K1_addr_done")
    I("v_add_co_u32 v6, vcc, v6, v5")
    nop(2)
    I("v_addc_co_u32 v7, vcc, 0, v7, vcc")
    for i in range(18):
        I("global_load_dwordx4 v[%d:%d], v[6:7], off" % (32 + 4 * i, 35 + 4 * i))
        if i != 17:
            I("v_add_co_u32 v6, vcc, s24, v6")
            nop(2)
            I("v_addc_co_u32 v7, vcc, 0, v7, vcc")
    I("s_waitcnt vmcnt(18)")
    X = list(range(104, 120))
    for k in range(8):
        I("v_lshlrev_b32 v%d, 16, v%d" % (X[2 * k], 8 + k))
        I("v_and_b32 v%d, 0xffff0000, v%d" % (X[2 * k + 1], 8 + k))
    I("v_add_f32 v16, v%d, v%d" % (X[0], X[1]))
    I("v_mul_f32 v17, v%d, v%d" % (X[0], X[0]))
    I("v_fmac_f32 v17, v%d, v%d" % (X[1], X[1]))
    for k in range(2, 16):
        I("v_add_f32 v16, v16, v%d" % X[k])
        I("v_fmac_f32 v17, v%d, v%d" % (X[k], X[k]))
    nop(2)
    row_allreduce("add", [16, 17])
    nop(1)
    for r, sbase in ((16, 28), (17, 32)):
        for j in range(4):
            I("v_readlane_b32 s%d, v%d, %d" % (sbase + j, r, 16 * j))
    nop(2)
    I("v_mov_b32 v16, s28")
    I("v_add_f32 v16, s29, v16")
    I("v_add_f32 v16, s30, v16")
    I("v_add_f32 v16, s31, v16")
    I("v_mov_b32 v17, s32")
    I("v_add_f32 v17, s33, v17")
    I("v_add_f32 v17, s34, v17")
    I("v_add_f32 v17, s35, v17")
    I("v_mul_f32 v16, %s, v16" % f32bits(1.0 / 576))
    I("v_mul_f32 v17, %s, v17" % f32bits(1.0 / 576))
    I("v_fma_f32 v17, -v16, v16, v17")
    I("v_cvt_pk_bf16_f32 v18, v16, v17")
    I("v_lshlrev_b32 v16, 16, v18")
    I("v_and_b32 v17, 0xffff0000, v18")
    I("v_add_f32 v17, %s, v17" % f32bits(1e-5))
    I("v_cvt_pk_bf16_f32 v18, v17, v17")
    I("v_lshlrev_b32 v17, 16, v18")
    I("v_sqrt_f32 v17, v17")
    nop(1)
    I("v_cvt_pk_bf16_f32 v18, v17, v17")
    I("v_lshlrev_b32 v17, 16, v18")
    I("v_rcp_f32 v17, v17")
    nop(1)
    for k in range(16):
        I("v_sub_f32 v%d, v%d, v16" % (X[k], X[k]))
    for k in range(8):
        I("v_cvt_pk_bf16_f32 v18, v%d, v%d" % (X[2 * k], X[2 * k + 1]))
        I("v_lshlrev_b32 v%d, 16, v18" % X[2 * k])
        I("v_and_b32 v%d, 0xffff0000, v18" % X[2 * k + 1])
    for k in range(16):
        I("v_mul_f32 v%d, v%d, v17" % (X[k], X[k]))
    for k in range(8):
        I("v_cvt_pk_bf16_f32 v18, v%d, v%d" % (X[2 * k], X[2 * k + 1]))
        I("v_lshlrev_b32 v%d, 16, v18" % X[2 * k])
        I("v_and_b32 v%d, 0xffff0000, v18" % X[2 * k + 1])
    I("v_lshlrev_b32 v18, 5, v3")
    I("ds_write_b128 v18, v[104:107]")
    I("ds_write_b128 v18, v[108:111] offset:16")
    I("ds_write_b128 v18, v[112:115] offset:2048")
    I("ds_write_b128 v18, v[116:119] offset:2064")
    I("s_waitcnt lgkmcnt(0)")
    I("v_lshlrev_b32 v18, 2, v2")
    for i in range(18):
        I("ds_read_b32 v%d, v18 offset:%d" % (104 + i, i * 128))
    for j in range(8):
        I("v_mov_b32 v%d, 0" % (16 + j))
    I("s_waitcnt lgkmcnt(0)")
    for i in range(18):
        I("s_waitcnt vmcnt(%d)" % (17 - i))
        for k in range(4):
            w = 32 + 4 * i + k
            I("v_lshlrev_b32 v124, 16, v%d" % w)
            I("v_and_b32 v125, 0xffff0000, v%d" % w)
            I("v_fmac_f32 v%d, v%d, v124" % (16 + 2 * k, 104 + i))
            I("v_fmac_f32 v%d, v%d, v125" % (17 + 2 * k, 104 + i))
    I("v_lshlrev_b32 v26, 8, v2")
    I("v_lshl_add_u32 v26, v1, 5, v26")
    I("ds_write_b128 v26, v[16:19] offset:4096")
    I("ds_write_b128 v26, v[20:23] offset:4112")
    I("s_waitcnt lgkmcnt(0)")
    I("s_barrier")
    I("v_cmp_gt_u32 vcc, 64, v0")
    I("s_and_saveexec_b64 s[26:27], vcc")
    I("s_cbranch_execz K1_exit")
    I("v_lshlrev_b32 v18, 2, v0")
    for i in range(32):
        I("ds_read_b32 v%d, v18 offset:%d" % (32 + i, 4096 + i * 256))
    I("s_waitcnt lgkmcnt(0)")
    for step in (16, 8, 4, 2, 1):
        for i in range(step):
            I("v_add_f32 v%d, v%d, v%d" % (32 + i, 32 + i, 32 + i + step))
    I("v_cvt_pk_bf16_f32 v18, v32, v32")
    I("s_cmp_ge_u32 s2, 64")
    I("s_cbranch_scc1 K1_mlp_fin")
    I("s_lshl_b32 s20, s2, 7")
    I("v_lshlrev_b32 v19, 1, v0")
    I("v_add_u32 v19, s20, v19")
    I("global_store_short v19, v18, s[12:13] offset:%d" % WS_Q)
    I("s_branch K1_exit")
    L("K1_mlp_fin")
    I("v_lshlrev_b32 v20, 16, v18")
    I("v_add_u32 v19, 32, v0")
    I("v_and_b32 v19, 63, v19")
    I("v_lshlrev_b32 v19, 2, v19")
    I("ds_bpermute_b32 v21, v19, v20")
    I("s_waitcnt lgkmcnt(0)")
    I("v_mul_f32 v22, v20, v20")
    I("v_mul_f32 v22, %s, v22" % f32bits(0.044715))
    I("v_fma_f32 v22, v22, v20, v20")
    I("v_mul_f32 v22, %s, v22" % f32bits(0.7978845608028654 * 2 * 1.4426950408889634))
    I("v_exp_f32 v22, v22")
    nop(1)
    I("v_add_f32 v22, 1.0, v22")
    I("v_rcp_f32 v22, v22")
    nop(1)
    I("v_sub_f32 v22, 1.0, v22")
    I("v_mul_f32 v22, v20, v22")
    I("v_cvt_pk_bf16_f32 v22, v22, v22")
    I("v_lshlrev_b32 v22, 16, v22")
    I("v_mul_f32 v22, v22, v21")
    I("v_cvt_pk_bf16_f32 v22, v22, v22")
    I("v_lshlrev_b32 v22, 16, v22")
    I("v_cmp_gt_u32 vcc, 32, v0")
    I("s_and_b64 exec, exec, vcc")
    I("s_cbranch_execz K1_exit")
    I("s_sub_u32 s20, s2, 64")
    I("s_lshl_b32 s20, s20, 7")
    I("v_lshlrev_b32 v19, 2, v0")
    I("v_add_u32 v19, s20, v19")
    I("v_add_u32 v19, %d, v19" % WS_H)
    I("global_store_dword v19, v22, s[12:13]")
    L("K1_exit")
    I("s_endpgm")
    emit()

def gen_k2():
    name = "attn_kernel"
    kernel_head(name)
    QA, QB = 4, 8
    MA, MB, LA, LB = 12, 13, 14, 15
    OA, OB = 16, 24
    SA, SB = 32, 40
    KB, VB = 48, 80
    T0 = 112
    I("s_cmp_ge_u32 s2, %d" % NWG2)
    I("s_cbranch_scc1 K2_exit")
    I("s_load_dwordx4 s[4:7], s[0:1], 8")
    I("s_load_dwordx2 s[8:9], s[0:1], 88")
    I("v_lshrrev_b32 v1, 6, v0")
    I("v_and_b32 v3, 63, v0")
    I("s_nop 0")
    I("v_readfirstlane_b32 s20, v1")
    I("s_lshr_b32 s21, s2, %d" % (NSPLIT.bit_length() - 1))
    I("s_and_b32 s22, s2, %d" % (NSPLIT - 1))
    I("s_mul_i32 s23, s22, %d" % NW2)
    I("s_add_u32 s23, s23, s20")
    I("s_mul_i32 s23, s23, %d" % (KEYS_WAVE * 256))
    I("s_lshl_b32 s24, s21, 24")
    I("s_add_u32 s23, s23, s24")
    I("v_lshlrev_b32 v1, 4, v3")
    I("v_add_u32 v2, 4096, v1")
    I("v_and_b32 v113, 15, v3")
    I("v_lshlrev_b32 v113, 4, v113")
    I("s_lshl_b32 s25, s21, 9")
    I("v_add_u32 v113, s25, v113")
    I("s_waitcnt lgkmcnt(0)")
    I("s_add_u32 s12, s4, s23")
    I("s_addc_u32 s13, s5, 0")
    I("s_mov_b32 s14, %d" % (KEYS_WAVE * 256))
    I("s_mov_b32 s15, 0x00020000")
    I("s_add_u32 s16, s6, s23")
    I("s_addc_u32 s17, s7, 0")
    I("s_mov_b32 s18, %d" % (KEYS_WAVE * 256))
    I("s_mov_b32 s19, 0x00020000")
    def kloads(soff):
        for i in range(8):
            I("buffer_load_dwordx4 v[%d:%d], v%d, s[12:15], %s offen offset:%d%s" %
              (KB + 4 * i, KB + 4 * i + 3, 1 if i < 4 else 2, soff, (i & 3) * 1024, NT))
    def vloads(soff):
        for i in range(8):
            I("buffer_load_dwordx4 v[%d:%d], v%d, s[16:19], %s offen offset:%d%s" %
              (VB + 4 * i, VB + 4 * i + 3, 1 if i < 4 else 2, soff, (i & 3) * 1024, NT))
    kloads("0")
    vloads("0")
    I("global_load_dwordx4 v[%d:%d], v113, s[8:9] offset:%d" % (QA, QA + 3, WS_Q))
    I("global_load_dwordx4 v[%d:%d], v113, s[8:9] offset:%d" % (QB, QB + 3, WS_Q + 256))
    I("v_mov_b32 v%d, %s" % (MA, f32bits(-1e30)))
    I("v_mov_b32 v%d, %s" % (MB, f32bits(-1e30)))
    I("v_mov_b32 v%d, 0" % LA)
    I("v_mov_b32 v%d, 0" % LB)
    for j in range(16):
        I("v_mov_b32 v%d, 0" % (OA + j))
    I("s_mov_b32 s26, %s" % f32bits(C_SCALE))
    I("s_mov_b32 s27, 0")
    I("s_mov_b32 s28, 0")
    I("s_waitcnt vmcnt(0)")
    def body(pf):
        I("s_waitcnt vmcnt(8)")
        for k in range(4):
            for i in range(8):
                for (S, Q) in ((SA, QA), (SB, QB)):
                    if k == 0:
                        I("v_dot2_f32_bf16 v%d, v%d, v%d, 0" % (S + i, KB + 4 * i + k, Q + k))
                    else:
                        I("v_dot2_f32_bf16 v%d, v%d, v%d, v%d" % (S + i, KB + 4 * i + k, Q + k, S + i))
        if pf:
            I("s_add_u32 s27, s27, 8192")
            kloads("s27")
        row_allreduce("add", list(range(SA, SA + 16)))
        for (S, M, Tm) in ((SA, MA, T0), (SB, MB, T0 + 1)):
            I("v_max3_f32 v%d, v%d, v%d, v%d" % (Tm, S, S + 1, S + 2))
            I("v_max3_f32 v%d, v%d, v%d, v%d" % (Tm, Tm, S + 3, S + 4))
            I("v_max3_f32 v%d, v%d, v%d, v%d" % (Tm, Tm, S + 5, S + 6))
            I("v_max3_f32 v%d, v%d, v%d, v%d" % (Tm, Tm, S + 7, M))
        for (M, Tm, Al, Nm) in ((MA, T0, T0 + 2, T0 + 4), (MB, T0 + 1, T0 + 3, T0 + 5)):
            I("v_sub_f32 v%d, v%d, v%d" % (Al, M, Tm))
            I("v_mul_f32 v%d, s26, v%d" % (Al, Al))
            I("v_mul_f32 v%d, s26, v%d" % (Nm, Tm))
            I("v_exp_f32 v%d, v%d" % (Al, Al))
            I("v_mov_b32 v%d, v%d" % (M, Tm))
        for (S, Nm) in ((SA, T0 + 4), (SB, T0 + 5)):
            for i in range(8):
                I("v_fma_f32 v%d, v%d, s26, -v%d" % (S + i, S + i, Nm))
        for (S, Nm) in ((SA, T0 + 4), (SB, T0 + 5)):
            for i in range(8):
                I("v_exp_f32 v%d, v%d" % (S + i, S + i))
        for (S, Lr, Al, O) in ((SA, LA, T0 + 2, OA), (SB, LB, T0 + 3, OB)):
            I("v_fma_f32 v%d, v%d, v%d, v%d" % (Lr, Lr, Al, S))
            for i in range(1, 8):
                I("v_add_f32 v%d, v%d, v%d" % (Lr, Lr, S + i))
            for j in range(8):
                I("v_mul_f32 v%d, v%d, v%d" % (O + j, Al, O + j))
        I("s_waitcnt vmcnt(%d)" % (8 if pf else 0))
        for i in range(8):
            for k in range(4):
                w = VB + 4 * i + k
                t0, t1 = T0 + 6 + 2 * (k & 1), T0 + 7 + 2 * (k & 1)
                I("v_lshlrev_b32 v%d, 16, v%d" % (t0, w))
                I("v_and_b32 v%d, 0xffff0000, v%d" % (t1, w))
                I("v_fmac_f32 v%d, v%d, v%d" % (OA + 2 * k, SA + i, t0))
                I("v_fmac_f32 v%d, v%d, v%d" % (OA + 2 * k + 1, SA + i, t1))
                I("v_fmac_f32 v%d, v%d, v%d" % (OB + 2 * k, SB + i, t0))
                I("v_fmac_f32 v%d, v%d, v%d" % (OB + 2 * k + 1, SB + i, t1))
        if pf:
            vloads("s27")
    L("K2_loop")
    body(True)
    I("s_add_u32 s28, s28, 1")
    I("s_cmp_lt_u32 s28, %d" % (NBATCH - 1))
    I("s_cbranch_scc1 K2_loop")
    body(False)
    I("v_lshrrev_b32 v%d, 4, v3" % T0)
    I("s_lshl_b32 s29, s20, 2")
    I("v_add_u32 v%d, s29, v%d" % (T0, T0))
    I("v_and_b32 v%d, 15, v3" % (T0 + 1))
    I("v_lshlrev_b32 v%d, 10, v%d" % (T0 + 2, T0))
    I("v_lshl_add_u32 v%d, v%d, 5, v%d" % (T0 + 2, T0 + 1, T0 + 2))
    I("v_lshlrev_b32 v%d, 4, v%d" % (T0 + 3, T0))
    I("ds_write_b128 v%d, v[%d:%d]" % (T0 + 2, OA, OA + 3))
    I("ds_write_b128 v%d, v[%d:%d] offset:16" % (T0 + 2, OA + 4, OA + 7))
    I("ds_write_b128 v%d, v[%d:%d] offset:512" % (T0 + 2, OB, OB + 3))
    I("ds_write_b128 v%d, v[%d:%d] offset:528" % (T0 + 2, OB + 4, OB + 7))
    I("ds_write_b128 v%d, v[12:15] offset:16384" % (T0 + 3))
    I("s_waitcnt vmcnt(0) lgkmcnt(0)")
    I("s_barrier")
    I("v_lshrrev_b32 v1, 7, v0")
    I("v_and_b32 v2, 127, v0")
    I("v_lshlrev_b32 v3, 2, v1")
    I("v_lshlrev_b32 v4, 9, v1")
    I("v_lshl_add_u32 v4, v2, 2, v4")
    for s in range(16):
        I("ds_read_b32 v%d, v3 offset:%d" % (16 + s, 16384 + s * 16))
        I("ds_read_b32 v%d, v3 offset:%d" % (32 + s, 16384 + s * 16 + 8))
        I("ds_read_b32 v%d, v4 offset:%d" % (48 + s, s * 1024))
    I("s_waitcnt lgkmcnt(0)")
    I("v_max3_f32 v5, v16, v17, v18")
    for s in range(3, 15, 2):
        I("v_max3_f32 v5, v5, v%d, v%d" % (16 + s, 17 + s))
    I("v_max_f32 v5, v5, v31")
    for s in range(16):
        I("v_sub_f32 v%d, v%d, v5" % (16 + s, 16 + s))
        I("v_mul_f32 v%d, s26, v%d" % (16 + s, 16 + s))
    for s in range(16):
        I("v_exp_f32 v%d, v%d" % (16 + s, 16 + s))
    nop(1)
    I("v_mul_f32 v6, v16, v32")
    I("v_mul_f32 v7, v16, v48")
    for s in range(1, 16):
        I("v_fmac_f32 v6, v%d, v%d" % (16 + s, 32 + s))
        I("v_fmac_f32 v7, v%d, v%d" % (16 + s, 48 + s))
    I("s_lshl_b32 s29, s2, 10")
    I("s_add_u32 s29, s29, %d" % WS_PO)
    I("v_add_u32 v4, s29, v4")
    I("global_store_dword v4, v7, s[8:9]")
    I("v_cmp_eq_u32 vcc, 0, v2")
    I("s_and_saveexec_b64 s[30:31], vcc")
    I("s_cbranch_execz K2_exit")
    I("s_lshl_b32 s29, s2, 4")
    I("s_add_u32 s29, s29, %d" % WS_PML)
    I("v_lshlrev_b32 v4, 3, v1")
    I("v_add_u32 v4, s29, v4")
    I("v_mov_b32 v8, v5")
    I("v_mov_b32 v9, v6")
    I("global_store_dwordx2 v4, v[8:9], s[8:9]")
    L("K2_exit")
    I("s_endpgm")
    emit()

def gen_k3():
    name = "out_kernel"
    kernel_head(name)
    I("s_cmp_ge_u32 s2, 272")
    I("s_cbranch_scc1 K3_exit")
    I("s_load_dwordx2 s[4:5], s[0:1], 32")
    I("s_load_dwordx2 s[6:7], s[0:1], 64")
    I("s_load_dwordx2 s[8:9], s[0:1], 88")
    I("v_mul_u32_u24 v1, 911, v0")
    I("v_lshrrev_b32 v1, 16, v1")
    I("v_mul_u32_u24 v2, 72, v1")
    I("v_sub_u32 v2, v0, v2")
    I("v_mul_u32_u24 v3, %d, v1" % (8 * 1152))
    I("v_lshl_add_u32 v3, v2, 4, v3")
    I("v_add_u32 v4, 4608, v3")
    I("s_waitcnt lgkmcnt(0)")
    I("s_sub_u32 s12, s2, 128")
    I("s_cmp_ge_u32 s2, 128")
    I("s_cselect_b32 s10, s6, s4")
    I("s_cselect_b32 s11, s7, s5")
    I("s_cselect_b32 s12, s12, s2")
    I("s_mul_i32 s12, s12, %d" % (32 * 1152))
    I("s_add_u32 s10, s10, s12")
    I("s_addc_u32 s11, s11, 0")
    for i in range(8):
        I("global_load_dwordx4 v[%d:%d], v%d, s[10:11] offset:%d" % (32 + 4 * i, 35 + 4 * i, 3 if i < 4 else 4, (i & 3) * 1152))
    I("s_mov_b32 s26, %s" % f32bits(C_SCALE))
    I("s_cmp_ge_u32 s2, 128")
    I("s_cbranch_scc1 K3_mlp_coef")
    I("s_lshr_b32 s13, s2, 3")
    I("s_lshr_b32 s14, s2, 2")
    I("s_and_b32 s14, s14, 1")
    I("s_and_b32 s15, s2, 3")
    I("s_mul_i32 s16, s13, %d" % (NSPLIT * 2))
    I("s_add_u32 s16, s16, s14")
    I("v_and_b32 v5, 31, v0")
    I("v_lshrrev_b32 v6, 5, v0")
    I("v_lshlrev_b32 v7, 13, v6")
    I("v_lshl_add_u32 v7, v5, 2, v7")
    I("s_lshl_b32 s17, s16, 9")
    I("s_lshl_b32 s18, s15, 7")
    I("s_add_u32 s17, s17, s18")
    I("s_add_u32 s17, s17, %d" % WS_PO)
    I("v_add_u32 v7, s17, v7")
    I("v_cmp_gt_u32 vcc, 256, v0")
    I("s_and_saveexec_b64 s[20:21], vcc")
    I("s_cbranch_execz K3_skip_p2load")
    I("v_add_u32 v9, 4096, v7")
    for i in range(8):
        I("global_load_dword v%d, v%d, s[8:9] offset:%d" % (64 + i, 7 if i < 4 else 9, (i & 3) * 1024))
    L("K3_skip_p2load")
    I("s_mov_b64 exec, s[20:21]")
    I("v_lshrrev_b32 v8, 6, v0")
    I("s_nop 0")
    I("v_readfirstlane_b32 s19, v8")
    I("s_cmp_lg_u32 s19, 0")
    I("s_cbranch_scc1 K3_p1_done")
    I("v_lshlrev_b32 v8, 4, v0")
    I("s_lshl_b32 s17, s16, 3")
    I("s_add_u32 s17, s17, %d" % WS_PML)
    I("v_add_u32 v8, s17, v8")
    I("global_load_dwordx2 v[10:11], v8, s[8:9]")
    I("s_waitcnt vmcnt(0)")
    I("v_mov_b32 v12, v10")
    nop(2)
    row_allreduce("max", [12])
    nop(1)
    for j in range(4):
        I("v_readlane_b32 s%d, v12, %d" % (28 + j, 16 * j))
    nop(2)
    I("v_mov_b32 v12, s28")
    I("v_max_f32 v12, s29, v12")
    I("v_max_f32 v12, s30, v12")
    I("v_max_f32 v12, s31, v12")
    I("v_sub_f32 v13, v10, v12")
    I("v_mul_f32 v13, s26, v13")
    I("v_exp_f32 v13, v13")
    nop(1)
    I("v_mul_f32 v14, v13, v11")
    nop(2)
    row_allreduce("add", [14])
    nop(1)
    for j in range(4):
        I("v_readlane_b32 s%d, v14, %d" % (28 + j, 16 * j))
    nop(2)
    I("v_mov_b32 v14, s28")
    I("v_add_f32 v14, s29, v14")
    I("v_add_f32 v14, s30, v14")
    I("v_add_f32 v14, s31, v14")
    I("v_rcp_f32 v14, v14")
    nop(1)
    I("v_mul_f32 v13, v13, v14")
    I("v_lshlrev_b32 v8, 2, v0")
    I("ds_write_b32 v8, v13 offset:128")
    L("K3_p1_done")
    I("s_waitcnt vmcnt(0) lgkmcnt(0)")
    I("s_barrier")
    I("v_lshlrev_b32 v8, 5, v6")
    I("ds_read_b128 v[12:15], v8 offset:128")
    I("ds_read_b128 v[16:19], v8 offset:144")
    I("s_waitcnt lgkmcnt(0)")
    I("v_mul_f32 v20, v12, v64")
    for i in range(1, 8):
        I("v_fmac_f32 v20, v%d, v%d" % (12 + i, 64 + i))
    I("v_lshlrev_b32 v8, 2, v0")
    I("v_cmp_gt_u32 vcc, 256, v0")
    I("s_and_saveexec_b64 s[20:21], vcc")
    I("ds_write_b32 v8, v20 offset:512")
    I("s_mov_b64 exec, s[20:21]")
    I("s_waitcnt lgkmcnt(0)")
    I("s_barrier")
    I("v_cmp_gt_u32 vcc, 32, v0")
    I("s_and_saveexec_b64 s[20:21], vcc")
    I("s_cbranch_execz K3_coef_done")
    for g in range(8):
        I("ds_read_b32 v%d, v8 offset:%d" % (12 + g, 512 + g * 128))
    I("s_waitcnt lgkmcnt(0)")
    for g in range(1, 8):
        I("v_add_f32 v12, v12, v%d" % (12 + g))
    I("v_cvt_pk_bf16_f32 v12, v12, v12")
    I("v_lshlrev_b32 v12, 16, v12")
    I("ds_write_b32 v8, v12")
    I("s_branch K3_coef_done")
    L("K3_mlp_coef")
    I("v_cmp_gt_u32 vcc, 32, v0")
    I("s_and_saveexec_b64 s[20:21], vcc")
    I("s_cbranch_execz K3_coef_done")
    I("s_sub_u32 s13, s2, 128")
    I("s_lshl_b32 s13, s13, 7")
    I("s_add_u32 s13, s13, %d" % WS_H)
    I("v_lshlrev_b32 v8, 2, v0")
    I("v_add_u32 v9, s13, v8")
    I("global_load_dword v12, v9, s[8:9]")
    I("s_waitcnt vmcnt(0)")
    I("ds_write_b32 v8, v12")
    L("K3_coef_done")
    I("s_mov_b64 exec, s[20:21]")
    I("s_waitcnt vmcnt(0) lgkmcnt(0)")
    I("s_barrier")
    I("v_lshlrev_b32 v8, 5, v1")
    I("ds_read_b128 v[12:15], v8")
    I("ds_read_b128 v[16:19], v8 offset:16")
    for j in range(8):
        I("v_mov_b32 v%d, 0" % (20 + j))
    I("s_waitcnt lgkmcnt(0)")
    for i in range(8):
        for k in range(4):
            w = 32 + 4 * i + k
            I("v_lshlrev_b32 v28, 16, v%d" % w)
            I("v_and_b32 v29, 0xffff0000, v%d" % w)
            I("v_fmac_f32 v%d, v%d, v28" % (20 + 2 * k, 12 + i))
            I("v_fmac_f32 v%d, v%d, v29" % (21 + 2 * k, 12 + i))
    I("v_mul_u32_u24 v8, 2304, v1")
    I("v_lshl_add_u32 v8, v2, 5, v8")
    I("ds_write_b128 v8, v[20:23] offset:2048")
    I("ds_write_b128 v8, v[24:27] offset:2064")
    I("s_waitcnt lgkmcnt(0)")
    I("s_barrier")
    I("v_lshlrev_b32 v8, 3, v0")
    for g in range(4):
        I("ds_read_b64 v[%d:%d], v8 offset:%d" % (12 + 2 * g, 13 + 2 * g, 2048 + g * 2304))
    I("s_waitcnt lgkmcnt(0)")
    for g in range(1, 4):
        I("v_add_f32 v12, v12, v%d" % (12 + 2 * g))
        I("v_add_f32 v13, v13, v%d" % (13 + 2 * g))
    I("s_mul_i32 s13, s2, 2304")
    I("s_add_u32 s13, s13, %d" % WS_P3)
    I("v_add_u32 v8, s13, v8")
    I("global_store_dwordx2 v8, v[12:13], s[8:9]")
    L("K3_exit")
    I("s_endpgm")
    emit()

def gen_k4():
    name = "fin_kernel"
    kernel_head(name)
    I("s_cmp_ge_u32 s2, 9")
    I("s_cbranch_scc1 K4_exit")
    I("s_load_dwordx2 s[4:5], s[0:1], 0")
    I("s_load_dwordx2 s[6:7], s[0:1], 72")
    I("s_load_dwordx2 s[8:9], s[0:1], 88")
    I("v_and_b32 v1, 63, v0")
    I("v_lshrrev_b32 v2, 6, v0")
    I("s_lshl_b32 s10, s2, 8")
    I("s_add_u32 s10, s10, %d" % WS_P3)
    I("v_lshlrev_b32 v3, 2, v1")
    I("v_add_u32 v3, s10, v3")
    I("v_mul_u32_u24 v4, %d, v2" % (32 * 2304))
    I("v_mul_u32_u24 v5, %d, v2" % (36 * 2304))
    I("v_add_u32 v4, v4, v3")
    I("v_add_u32 v5, v5, v3")
    I("v_add_u32 v5, %d, v5" % (128 * 2304))
    I("s_waitcnt lgkmcnt(0)")
    for i in range(32):
        I("global_load_dword v%d, v4, s[8:9]" % (16 + i))
        I("v_add_u32 v4, 2304, v4")
    for i in range(36):
        I("global_load_dword v%d, v5, s[8:9]" % (48 + i))
        I("v_add_u32 v5, 2304, v5")
    I("s_waitcnt vmcnt(36)")
    for i in range(1, 32):
        I("v_add_f32 v16, v16, v%d" % (16 + i))
    I("s_waitcnt vmcnt(0)")
    for i in range(1, 36):
        I("v_add_f32 v48, v48, v%d" % (48 + i))
    I("v_lshlrev_b32 v6, 2, v0")
    I("ds_write_b32 v6, v16")
    I("ds_write_b32 v6, v48 offset:1024")
    I("s_waitcnt lgkmcnt(0)")
    I("s_barrier")
    I("v_cmp_gt_u32 vcc, 64, v0")
    I("s_and_saveexec_b64 s[20:21], vcc")
    I("s_cbranch_execz K4_exit")
    for g in range(4):
        I("ds_read_b32 v%d, v6 offset:%d" % (8 + g, g * 256))
        I("ds_read_b32 v%d, v6 offset:%d" % (12 + g, 1024 + g * 256))
    I("s_lshl_b32 s10, s2, 7")
    I("v_lshlrev_b32 v7, 1, v1")
    I("v_add_u32 v7, s10, v7")
    I("global_load_ushort v16, v7, s[4:5]")
    I("s_waitcnt lgkmcnt(0)")
    I("v_add_f32 v8, v8, v9")
    I("v_add_f32 v10, v10, v11")
    I("v_add_f32 v8, v8, v10")
    I("v_add_f32 v12, v12, v13")
    I("v_add_f32 v14, v14, v15")
    I("v_add_f32 v12, v12, v14")
    I("v_cvt_pk_bf16_f32 v9, v8, v12")
    I("v_lshlrev_b32 v8, 16, v9")
    I("v_and_b32 v12, 0xffff0000, v9")
    I("v_mul_f32 v13, %s, v12" % f32bits(-1.4426950408889634))
    I("v_exp_f32 v13, v13")
    nop(1)
    I("v_add_f32 v13, 1.0, v13")
    I("v_rcp_f32 v13, v13")
    nop(1)
    I("v_mul_f32 v13, v12, v13")
    I("v_cvt_pk_bf16_f32 v13, v13, v13")
    I("v_lshlrev_b32 v13, 16, v13")
    I("v_mul_f32 v13, v8, v13")
    I("v_cvt_pk_bf16_f32 v13, v13, v13")
    I("v_lshlrev_b32 v13, 16, v13")
    I("s_waitcnt vmcnt(0)")
    I("v_lshlrev_b32 v16, 16, v16")
    I("v_add_f32 v13, v16, v13")
    I("v_cvt_pk_bf16_f32 v13, v13, v13")
    I("global_store_short v7, v13, s[6:7]")
    L("K4_exit")
    I("s_endpgm")
    emit()

def main():
    emit(HEADER.rstrip("\n"))
    emit('.amdgcn_target "amdgcn-amd-amdhsa--gfx950"')
    emit(".text")
    gen_k1()
    gen_k2()
    gen_k3()
    gen_k4()
    emit('.section .rodata,"a"')
    emit(".p2align 6")
    kernel_desc("proj_kernel", 128)
    kernel_desc("attn_kernel", 128)
    kernel_desc("out_kernel", 72)
    kernel_desc("fin_kernel", 84)
    txt = "\n".join(x for x in out if x is not None) + "\n"
    path = sys.argv[1] if len(sys.argv) > 1 else "recurrent_scan__gqa_block_cached__glu_gated_geglu__decode.s"
    open(path, "w").write(txt)
    print("wrote", path, len(txt), "bytes")

main()
```

```python
import sys

import os
NSPLIT = int(os.environ.get("NSPLIT", 64))
NW2 = int(os.environ.get("NW2", 4))
KEYS_WAVE = 65536 // NSPLIT // NW2
NBATCH = KEYS_WAVE // 32
NWG2 = 16 * NSPLIT
NPF = int(os.environ.get("NPF", 0))
PFB = int(os.environ.get("PFB", 1))
NT = os.environ.get("NT", " nt")

WS_Q = 0
WS_H = 0x4000
WS_PO = 0x10000
WS_PML = 0x300000
WS_P3 = 0x400000

C_SCALE = 1.4426950408889634 / (128.0 ** 0.5)

import struct
def f32bits(x):
    return "0x%08x" % struct.unpack("<I", struct.pack("<f", x))[0]

out = []
def emit(s=""):
    out.append(s)
def I(s):
    out.append("    " + s)
def L(s):
    out.append(s + ":")
def nop(n):
    I("s_nop %d" % (n - 1))

DPP = "row_mask:0xf bank_mask:0xf"
def row_allreduce(op, regs):
    for ctl in ("quad_perm:[1,0,3,2]", "quad_perm:[2,3,0,1]", "row_half_mirror", "row_mirror"):
        for r in regs:
            I("v_%s_f32_dpp v%d, v%d, v%d %s %s" % (op, r, r, r, ctl, DPP))
        if len(regs) < 3:
            nop(2)

def kernel_head(name):
    emit(".p2align 8")
    emit(".type %s,@function" % name)
    emit("%s:" % name)

def kernel_desc(name, vgpr, sgpr=96):
    acc = (vgpr + 3) // 4 * 4
    emit(".amdhsa_kernel %s" % name)
    emit("  .amdhsa_next_free_vgpr %d" % vgpr)
    emit("  .amdhsa_next_free_sgpr %d" % sgpr)
    emit("  .amdhsa_accum_offset %d" % acc)
    emit("  .amdhsa_group_segment_fixed_size 0")
    emit("  .amdhsa_kernarg_size 96")
    emit("  .amdhsa_user_sgpr_count 2")
    emit("  .amdhsa_user_sgpr_kernarg_segment_ptr 1")
    emit("  .amdhsa_system_sgpr_workgroup_id_x 1")
    emit(".end_amdhsa_kernel")

HEADER = """; Kernarg layout for this problem (96 bytes, ptrs only, base s[0:1]):
;   offset   0: d_in[0] A_x  shape=(1, 1, 576) dtype=bfloat16 strides=(1152, 1152, 2) contiguous=True
;   offset   8: d_in[1] A_k_cache  shape=(1, 16, 65536, 128) dtype=bfloat16 strides=(268435456, 16777216, 256, 2) contiguous=True
;   offset  16: d_in[2] A_v_cache  shape=(1, 16, 65536, 128) dtype=bfloat16 strides=(268435456, 16777216, 256, 2) contiguous=True
;   offset  24: d_in[3] A_wq  shape=(576, 4096) dtype=bfloat16 strides=(8192, 2) contiguous=True
;   offset  32: d_in[4] A_wo  shape=(4096, 576) dtype=bfloat16 strides=(1152, 2) contiguous=True
;   offset  40: d_in[5] B_x  shape=(1, 1, 576) dtype=bfloat16 strides=(1152, 1152, 2) contiguous=True
;   offset  48: d_in[6] B_w_gate  shape=(576, 4608) dtype=bfloat16 strides=(9216, 2) contiguous=True
;   offset  56: d_in[7] B_w_up  shape=(576, 4608) dtype=bfloat16 strides=(9216, 2) contiguous=True
;   offset  64: d_in[8] B_w_down  shape=(4608, 576) dtype=bfloat16 strides=(1152, 2) contiguous=True
;   offset  72: d_out     shape=(1, 1, 576) dtype=bfloat16 (2 bytes/elem)
;   offset  80: d_debug   256 bytes
;   offset  88: d_ws      1073741824 bytes workspace
; @launch kernel=proj_kernel grid=(%d,1,1) block=(256,1,1) lds=12288
; @launch kernel=attn_kernel grid=(%d,1,1) block=(%d,1,1) lds=16640
; @launch kernel=out_kernel grid=(272,1,1) block=(288,1,1) lds=11264
; @launch kernel=fin_kernel grid=(9,1,1) block=(256,1,1) lds=2048
""" % (208 + NPF, NWG2, NW2 * 64)

def gen_k1():
    name = "proj_kernel"
    kernel_head(name)
    I("s_cmp_ge_u32 s2, %d" % (208 + NPF))
    I("s_cbranch_scc1 K1_exit")
    if NPF:
        I("s_cmp_ge_u32 s2, 208")
        I("s_cbranch_scc1 K1_pf")
    I("s_load_dwordx2 s[4:5], s[0:1], 0")
    I("s_load_dwordx2 s[6:7], s[0:1], 24")
    I("s_load_dwordx4 s[8:11], s[0:1], 48")
    I("s_load_dwordx2 s[12:13], s[0:1], 88")
    I("v_and_b32 v1, 7, v0")
    I("v_lshrrev_b32 v2, 3, v0")
    I("v_and_b32 v3, 63, v0")
    I("v_lshlrev_b32 v4, 4, v3")
    I("s_waitcnt lgkmcnt(0)")
    I("s_mov_b32 s16, s4")
    I("s_mov_b32 s17, s5")
    I("s_mov_b32 s18, 1152")
    I("s_mov_b32 s19, 0x00020000")
    I("buffer_load_dwordx4 v[8:11], v4, s[16:19], 0 offen")
    I("buffer_load_dwordx4 v[12:15], v4, s[16:19], 0 offen offset:1024")
    I("s_cmp_ge_u32 s2, 64")
    I("s_cbranch_scc1 K1_mlp_addr")
    I("s_lshl_b32 s20, s2, 7")
    I("s_add_u32 s22, s6, s20")
    I("s_addc_u32 s23, s7, 0")
    I("v_lshlrev_b32 v5, 4, v1")
    I("v_lshl_add_u32 v5, v2, 13, v5")
    I("s_mov_b32 s24, %d" % (32 * 8192))
    I("v_mov_b32 v6, s22")
    I("v_mov_b32 v7, s23")
    I("s_branch K1_addr_done")
    L("K1_mlp_addr")
    I("s_sub_u32 s20, s2, 64")
    I("s_lshl_b32 s20, s20, 6")
    I("v_cmp_gt_u32 vcc, 4, v1")
    I("v_mov_b32 v6, s10")
    I("v_mov_b32 v7, s11")
    I("v_mov_b32 v16, s8")
    I("v_mov_b32 v17, s9")
    I("v_cndmask_b32 v6, v6, v16, vcc")
    I("v_cndmask_b32 v7, v7, v17, vcc")
    I("v_and_b32 v5, 3, v1")
    I("v_lshlrev_b32 v5, 4, v5")
    I("v_mul_u32_u24 v16, 9216, v2")
    I("v_add_u32 v5, v5, v16")
    I("v_add_u32 v5, s20, v5")
    I("s_mov_b32 s24, %d" % (32 * 9216))
    L("K1_addr_done")
    I("v_add_co_u32 v6, vcc, v6, v5")
    nop(2)
    I("v_addc_co_u32 v7, vcc, 0, v7, vcc")
    for i in range(18):
        I("global_load_dwordx4 v[%d:%d], v[6:7], off" % (32 + 4 * i, 35 + 4 * i))
        if i != 17:
            I("v_add_co_u32 v6, vcc, s24, v6")
            nop(2)
            I("v_addc_co_u32 v7, vcc, 0, v7, vcc")
    I("s_waitcnt vmcnt(18)")
    X = list(range(104, 120))
    for k in range(8):
        I("v_lshlrev_b32 v%d, 16, v%d" % (X[2 * k], 8 + k))
        I("v_and_b32 v%d, 0xffff0000, v%d" % (X[2 * k + 1], 8 + k))
    I("v_add_f32 v16, v%d, v%d" % (X[0], X[1]))
    I("v_mul_f32 v17, v%d, v%d" % (X[0], X[0]))
    I("v_fmac_f32 v17, v%d, v%d" % (X[1], X[1]))
    for k in range(2, 16):
        I("v_add_f32 v16, v16, v%d" % X[k])
        I("v_fmac_f32 v17, v%d, v%d" % (X[k], X[k]))
    nop(2)
    row_allreduce("add", [16, 17])
    nop(1)
    for r, sbase in ((16, 28), (17, 32)):
        for j in range(4):
            I("v_readlane_b32 s%d, v%d, %d" % (sbase + j, r, 16 * j))
    nop(2)
    I("v_mov_b32 v16, s28")
    I("v_add_f32 v16, s29, v16")
    I("v_add_f32 v16, s30, v16")
    I("v_add_f32 v16, s31, v16")
    I("v_mov_b32 v17, s32")
    I("v_add_f32 v17, s33, v17")
    I("v_add_f32 v17, s34, v17")
    I("v_add_f32 v17, s35, v17")
    I("v_mul_f32 v16, %s, v16" % f32bits(1.0 / 576))
    I("v_mul_f32 v17, %s, v17" % f32bits(1.0 / 576))
    I("v_fma_f32 v17, -v16, v16, v17")
    I("v_cvt_pk_bf16_f32 v18, v16, v17")
    I("v_lshlrev_b32 v16, 16, v18")
    I("v_and_b32 v17, 0xffff0000, v18")
    I("v_add_f32 v17, %s, v17" % f32bits(1e-5))
    I("v_cvt_pk_bf16_f32 v18, v17, v17")
    I("v_lshlrev_b32 v17, 16, v18")
    I("v_sqrt_f32 v17, v17")
    nop(1)
    I("v_cvt_pk_bf16_f32 v18, v17, v17")
    I("v_lshlrev_b32 v17, 16, v18")
    I("v_rcp_f32 v17, v17")
    nop(1)
    for k in range(16):
        I("v_sub_f32 v%d, v%d, v16" % (X[k], X[k]))
    for k in range(8):
        I("v_cvt_pk_bf16_f32 v18, v%d, v%d" % (X[2 * k], X[2 * k + 1]))
        I("v_lshlrev_b32 v%d, 16, v18" % X[2 * k])
        I("v_and_b32 v%d, 0xffff0000, v18" % X[2 * k + 1])
    for k in range(16):
        I("v_mul_f32 v%d, v%d, v17" % (X[k], X[k]))
    for k in range(8):
        I("v_cvt_pk_bf16_f32 v18, v%d, v%d" % (X[2 * k], X[2 * k + 1]))
        I("v_lshlrev_b32 v%d, 16, v18" % X[2 * k])
        I("v_and_b32 v%d, 0xffff0000, v18" % X[2 * k + 1])
    I("v_lshlrev_b32 v18, 5, v3")
    I("ds_write_b128 v18, v[104:107]")
    I("ds_write_b128 v18, v[108:111] offset:16")
    I("ds_write_b128 v18, v[112:115] offset:2048")
    I("ds_write_b128 v18, v[116:119] offset:2064")
    I("s_waitcnt lgkmcnt(0)")
    I("v_lshlrev_b32 v18, 2, v2")
    for i in range(18):
        I("ds_read_b32 v%d, v18 offset:%d" % (104 + i, i * 128))
    for j in range(8):
        I("v_mov_b32 v%d, 0" % (16 + j))
    I("s_waitcnt lgkmcnt(0)")
    for i in range(18):
        I("s_waitcnt vmcnt(%d)" % (17 - i))
        for k in range(4):
            w = 32 + 4 * i + k
            I("v_lshlrev_b32 v124, 16, v%d" % w)
            I("v_and_b32 v125, 0xffff0000, v%d" % w)
            I("v_fmac_f32 v%d, v%d, v124" % (16 + 2 * k, 104 + i))
            I("v_fmac_f32 v%d, v%d, v125" % (17 + 2 * k, 104 + i))
    I("v_lshlrev_b32 v26, 8, v2")
    I("v_lshl_add_u32 v26, v1, 5, v26")
    I("ds_write_b128 v26, v[16:19] offset:4096")
    I("ds_write_b128 v26, v[20:23] offset:4112")
    I("s_waitcnt lgkmcnt(0)")
    I("s_barrier")
    I("v_cmp_gt_u32 vcc, 64, v0")
    I("s_and_saveexec_b64 s[26:27], vcc")
    I("s_cbranch_execz K1_exit")
    I("v_lshlrev_b32 v18, 2, v0")
    for i in range(32):
        I("ds_read_b32 v%d, v18 offset:%d" % (32 + i, 4096 + i * 256))
    I("s_waitcnt lgkmcnt(0)")
    for step in (16, 8, 4, 2, 1):
        for i in range(step):
            I("v_add_f32 v%d, v%d, v%d" % (32 + i, 32 + i, 32 + i + step))
    I("v_cvt_pk_bf16_f32 v18, v32, v32")
    I("s_cmp_ge_u32 s2, 64")
    I("s_cbranch_scc1 K1_mlp_fin")
    I("s_lshl_b32 s20, s2, 7")
    I("v_lshlrev_b32 v19, 1, v0")
    I("v_add_u32 v19, s20, v19")
    I("global_store_short v19, v18, s[12:13] offset:%d" % WS_Q)
    I("s_branch K1_exit")
    L("K1_mlp_fin")
    I("v_lshlrev_b32 v20, 16, v18")
    I("v_add_u32 v19, 32, v0")
    I("v_and_b32 v19, 63, v19")
    I("v_lshlrev_b32 v19, 2, v19")
    I("ds_bpermute_b32 v21, v19, v20")
    I("s_waitcnt lgkmcnt(0)")
    I("v_mul_f32 v22, v20, v20")
    I("v_mul_f32 v22, %s, v22" % f32bits(0.044715))
    I("v_fma_f32 v22, v22, v20, v20")
    I("v_mul_f32 v22, %s, v22" % f32bits(0.7978845608028654 * 2 * 1.4426950408889634))
    I("v_exp_f32 v22, v22")
    nop(1)
    I("v_add_f32 v22, 1.0, v22")
    I("v_rcp_f32 v22, v22")
    nop(1)
    I("v_sub_f32 v22, 1.0, v22")
    I("v_mul_f32 v22, v20, v22")
    I("v_cvt_pk_bf16_f32 v22, v22, v22")
    I("v_lshlrev_b32 v22, 16, v22")
    I("v_mul_f32 v22, v22, v21")
    I("v_cvt_pk_bf16_f32 v22, v22, v22")
    I("v_lshlrev_b32 v22, 16, v22")
    I("v_cmp_gt_u32 vcc, 32, v0")
    I("s_and_b64 exec, exec, vcc")
    I("s_cbranch_execz K1_exit")
    I("s_sub_u32 s20, s2, 64")
    I("s_lshl_b32 s20, s20, 7")
    I("v_lshlrev_b32 v19, 2, v0")
    I("v_add_u32 v19, s20, v19")
    I("v_add_u32 v19, %d, v19" % WS_H)
    I("global_store_dword v19, v22, s[12:13]")
    I("s_branch K1_exit")
    if NPF:
        L("K1_pf")
        R = NWG2 // NPF
        I("s_load_dwordx4 s[4:7], s[0:1], 8")
        I("v_lshrrev_b32 v1, 6, v0")
        I("v_and_b32 v2, 63, v0")
        I("v_lshlrev_b32 v2, 4, v2")
        I("s_sub_u32 s8, s2, 208")
        I("s_mul_i32 s8, s8, %d" % (R * NW2 * KEYS_WAVE * 256))
        I("v_mul_u32_u24 v3, %d, v1" % (KEYS_WAVE * 256))
        I("v_add_u32 v2, v2, v3")
        I("v_add_u32 v2, s8, v2")
        I("s_waitcnt lgkmcnt(0)")
        I("s_mov_b32 s12, s4"); I("s_mov_b32 s13, s5"); I("s_mov_b32 s14, 0x10000000"); I("s_mov_b32 s15, 0x00020000")
        I("s_mov_b32 s16, s6"); I("s_mov_b32 s17, s7"); I("s_mov_b32 s18, 0x10000000"); I("s_mov_b32 s19, 0x00020000")
        n = 0
        for w in range(R):
            for i in range(8 * PFB):
                I("buffer_load_dwordx4 v[%d:%d], v2, s[12:15], 0 offen offset:%d" % (8 + 4 * (n % 28), 11 + 4 * (n % 28), (i & 3) * 1024)) ; n += 1
                I("buffer_load_dwordx4 v[%d:%d], v2, s[16:19], 0 offen offset:%d" % (8 + 4 * (n % 28), 11 + 4 * (n % 28), (i & 3) * 1024)) ; n += 1
                if (i & 3) == 3:
                    I("v_add_u32 v2, 4096, v2")
            I("v_add_u32 v2, %d, v2" % (NW2 * KEYS_WAVE * 256 - 8192 * PFB))
        I("s_waitcnt vmcnt(0)")
    L("K1_exit")
    I("s_endpgm")
    emit()

def gen_k2():
    name = "attn_kernel"
    kernel_head(name)
    QA, QB = 4, 8
    MA, MB, LA, LB = 12, 13, 14, 15
    OA, OB = 16, 24
    SA, SB = 32, 40
    KB, VB = 48, 80
    T0 = 112
    I("s_cmp_ge_u32 s2, %d" % NWG2)
    I("s_cbranch_scc1 K2_exit")
    I("s_load_dwordx4 s[4:7], s[0:1], 8")
    I("s_load_dwordx2 s[8:9], s[0:1], 88")
    I("v_lshrrev_b32 v1, 6, v0")
    I("v_and_b32 v3, 63, v0")
    I("s_nop 0")
    I("v_readfirstlane_b32 s20, v1")
    I("s_lshr_b32 s21, s2, %d" % (NSPLIT.bit_length() - 1))
    I("s_and_b32 s22, s2, %d" % (NSPLIT - 1))
    I("s_mul_i32 s23, s22, %d" % NW2)
    I("s_add_u32 s23, s23, s20")
    I("s_mul_i32 s23, s23, %d" % (KEYS_WAVE * 256))
    I("s_lshl_b32 s24, s21, 24")
    I("s_add_u32 s23, s23, s24")
    I("v_lshlrev_b32 v1, 4, v3")
    I("v_add_u32 v2, 4096, v1")
    I("v_and_b32 v113, 15, v3")
    I("v_lshlrev_b32 v113, 4, v113")
    I("s_lshl_b32 s25, s21, 9")
    I("v_add_u32 v113, s25, v113")
    I("s_waitcnt lgkmcnt(0)")
    I("s_add_u32 s12, s4, s23")
    I("s_addc_u32 s13, s5, 0")
    I("s_mov_b32 s14, %d" % (KEYS_WAVE * 256))
    I("s_mov_b32 s15, 0x00020000")
    I("s_add_u32 s16, s6, s23")
    I("s_addc_u32 s17, s7, 0")
    I("s_mov_b32 s18, %d" % (KEYS_WAVE * 256))
    I("s_mov_b32 s19, 0x00020000")
    GL = os.environ.get("GL", "0") == "1"
    def xloads(base, srd, soff):
        if GL:
            for i in range(8):
                I("global_load_dwordx4 v[%d:%d], v%d, s[%d:%d] offset:%d%s" %
                  (base + 4 * i, base + 4 * i + 3, 1 if i < 4 else 2, srd, srd + 1, (i & 3) * 1024, NT))
            I("s_add_u32 s%d, s%d, 8192" % (srd, srd))
            I("s_addc_u32 s%d, s%d, 0" % (srd + 1, srd + 1))
        else:
            for i in range(8):
                I("buffer_load_dwordx4 v[%d:%d], v%d, s[%d:%d], %s offen offset:%d%s" %
                  (base + 4 * i, base + 4 * i + 3, 1 if i < 4 else 2, srd, srd + 3, soff, (i & 3) * 1024, NT))
    def kloads(soff):
        xloads(KB, 12, soff)
    def vloads(soff):
        xloads(VB, 16, soff)
    kloads("0")
    vloads("0")
    I("global_load_dwordx4 v[%d:%d], v113, s[8:9] offset:%d" % (QA, QA + 3, WS_Q))
    I("global_load_dwordx4 v[%d:%d], v113, s[8:9] offset:%d" % (QB, QB + 3, WS_Q + 256))
    I("v_mov_b32 v%d, %s" % (MA, f32bits(-1e30)))
    I("v_mov_b32 v%d, %s" % (MB, f32bits(-1e30)))
    I("v_mov_b32 v%d, 0" % LA)
    I("v_mov_b32 v%d, 0" % LB)
    for j in range(16):
        I("v_mov_b32 v%d, 0" % (OA + j))
    I("s_mov_b32 s26, %s" % f32bits(C_SCALE))
    I("s_mov_b32 s27, 0")
    I("s_mov_b32 s28, 0")
    I("s_waitcnt vmcnt(0)")
    def body(pf):
        I("s_waitcnt vmcnt(8)")
        for k in range(4):
            for i in range(8):
                for (S, Q) in ((SA, QA), (SB, QB)):
                    if k == 0:
                        I("v_dot2_f32_bf16 v%d, v%d, v%d, 0" % (S + i, KB + 4 * i + k, Q + k))
                    else:
                        I("v_dot2_f32_bf16 v%d, v%d, v%d, v%d" % (S + i, KB + 4 * i + k, Q + k, S + i))
        if pf:
            I("s_add_u32 s27, s27, 8192")
            kloads("s27")
        row_allreduce("add", list(range(SA, SA + 16)))
        for (S, M, Tm) in ((SA, MA, T0), (SB, MB, T0 + 1)):
            I("v_max3_f32 v%d, v%d, v%d, v%d" % (Tm, S, S + 1, S + 2))
            I("v_max3_f32 v%d, v%d, v%d, v%d" % (Tm, Tm, S + 3, S + 4))
            I("v_max3_f32 v%d, v%d, v%d, v%d" % (Tm, Tm, S + 5, S + 6))
            I("v_max3_f32 v%d, v%d, v%d, v%d" % (Tm, Tm, S + 7, M))
        for (M, Tm, Al, Nm) in ((MA, T0, T0 + 2, T0 + 4), (MB, T0 + 1, T0 + 3, T0 + 5)):
            I("v_sub_f32 v%d, v%d, v%d" % (Al, M, Tm))
            I("v_mul_f32 v%d, s26, v%d" % (Al, Al))
            I("v_mul_f32 v%d, s26, v%d" % (Nm, Tm))
            I("v_exp_f32 v%d, v%d" % (Al, Al))
            I("v_mov_b32 v%d, v%d" % (M, Tm))
        for (S, Nm) in ((SA, T0 + 4), (SB, T0 + 5)):
            for i in range(8):
                I("v_fma_f32 v%d, v%d, s26, -v%d" % (S + i, S + i, Nm))
        for (S, Nm) in ((SA, T0 + 4), (SB, T0 + 5)):
            for i in range(8):
                I("v_exp_f32 v%d, v%d" % (S + i, S + i))
        for (S, Lr, Al, O) in ((SA, LA, T0 + 2, OA), (SB, LB, T0 + 3, OB)):
            I("v_fma_f32 v%d, v%d, v%d, v%d" % (Lr, Lr, Al, S))
            for i in range(1, 8):
                I("v_add_f32 v%d, v%d, v%d" % (Lr, Lr, S + i))
            for j in range(8):
                I("v_mul_f32 v%d, v%d, v%d" % (O + j, Al, O + j))
        I("s_waitcnt vmcnt(%d)" % (8 if pf else 0))
        for i in range(8):
            for k in range(4):
                w = VB + 4 * i + k
                t0, t1 = T0 + 6 + 2 * (k & 1), T0 + 7 + 2 * (k & 1)
                I("v_lshlrev_b32 v%d, 16, v%d" % (t0, w))
                I("v_and_b32 v%d, 0xffff0000, v%d" % (t1, w))
                I("v_fmac_f32 v%d, v%d, v%d" % (OA + 2 * k, SA + i, t0))
                I("v_fmac_f32 v%d, v%d, v%d" % (OA + 2 * k + 1, SA + i, t1))
                I("v_fmac_f32 v%d, v%d, v%d" % (OB + 2 * k, SB + i, t0))
                I("v_fmac_f32 v%d, v%d, v%d" % (OB + 2 * k + 1, SB + i, t1))
        if pf:
            vloads("s27")
    L("K2_loop")
    body(True)
    I("s_add_u32 s28, s28, 1")
    I("s_cmp_lt_u32 s28, %d" % (NBATCH - 1))
    I("s_cbranch_scc1 K2_loop")
    body(False)
    I("v_lshrrev_b32 v%d, 4, v3" % T0)
    I("s_lshl_b32 s29, s20, 2")
    I("v_add_u32 v%d, s29, v%d" % (T0, T0))
    I("v_and_b32 v%d, 15, v3" % (T0 + 1))
    I("v_lshlrev_b32 v%d, 10, v%d" % (T0 + 2, T0))
    I("v_lshl_add_u32 v%d, v%d, 5, v%d" % (T0 + 2, T0 + 1, T0 + 2))
    I("v_lshlrev_b32 v%d, 4, v%d" % (T0 + 3, T0))
    I("ds_write_b128 v%d, v[%d:%d]" % (T0 + 2, OA, OA + 3))
    I("ds_write_b128 v%d, v[%d:%d] offset:16" % (T0 + 2, OA + 4, OA + 7))
    I("ds_write_b128 v%d, v[%d:%d] offset:512" % (T0 + 2, OB, OB + 3))
    I("ds_write_b128 v%d, v[%d:%d] offset:528" % (T0 + 2, OB + 4, OB + 7))
    I("ds_write_b128 v%d, v[12:15] offset:16384" % (T0 + 3))
    I("s_waitcnt vmcnt(0) lgkmcnt(0)")
    I("s_barrier")
    I("v_lshrrev_b32 v1, 7, v0")
    I("v_and_b32 v2, 127, v0")
    I("v_lshlrev_b32 v3, 2, v1")
    I("v_lshlrev_b32 v4, 9, v1")
    I("v_lshl_add_u32 v4, v2, 2, v4")
    for s in range(16):
        I("ds_read_b32 v%d, v3 offset:%d" % (16 + s, 16384 + s * 16))
        I("ds_read_b32 v%d, v3 offset:%d" % (32 + s, 16384 + s * 16 + 8))
        I("ds_read_b32 v%d, v4 offset:%d" % (48 + s, s * 1024))
    I("s_waitcnt lgkmcnt(0)")
    I("v_max3_f32 v5, v16, v17, v18")
    for s in range(3, 15, 2):
        I("v_max3_f32 v5, v5, v%d, v%d" % (16 + s, 17 + s))
    I("v_max_f32 v5, v5, v31")
    for s in range(16):
        I("v_sub_f32 v%d, v%d, v5" % (16 + s, 16 + s))
        I("v_mul_f32 v%d, s26, v%d" % (16 + s, 16 + s))
    for s in range(16):
        I("v_exp_f32 v%d, v%d" % (16 + s, 16 + s))
    nop(1)
    I("v_mul_f32 v6, v16, v32")
    I("v_mul_f32 v7, v16, v48")
    for s in range(1, 16):
        I("v_fmac_f32 v6, v%d, v%d" % (16 + s, 32 + s))
        I("v_fmac_f32 v7, v%d, v%d" % (16 + s, 48 + s))
    I("s_lshl_b32 s29, s2, 10")
    I("s_add_u32 s29, s29, %d" % WS_PO)
    I("v_add_u32 v4, s29, v4")
    I("global_store_dword v4, v7, s[8:9]")
    I("v_cmp_eq_u32 vcc, 0, v2")
    I("s_and_saveexec_b64 s[30:31], vcc")
    I("s_cbranch_execz K2_exit")
    I("s_lshl_b32 s29, s2, 4")
    I("s_add_u32 s29, s29, %d" % WS_PML)
    I("v_lshlrev_b32 v4, 3, v1")
    I("v_add_u32 v4, s29, v4")
    I("v_mov_b32 v8, v5")
    I("v_mov_b32 v9, v6")
    I("global_store_dwordx2 v4, v[8:9], s[8:9]")
    L("K2_exit")
    I("s_endpgm")
    emit()

def gen_k3():
    name = "out_kernel"
    kernel_head(name)
    I("s_cmp_ge_u32 s2, 272")
    I("s_cbranch_scc1 K3_exit")
    I("s_load_dwordx2 s[4:5], s[0:1], 32")
    I("s_load_dwordx2 s[6:7], s[0:1], 64")
    I("s_load_dwordx2 s[8:9], s[0:1], 88")
    I("v_mul_u32_u24 v1, 911, v0")
    I("v_lshrrev_b32 v1, 16, v1")
    I("v_mul_u32_u24 v2, 72, v1")
    I("v_sub_u32 v2, v0, v2")
    I("v_mul_u32_u24 v3, %d, v1" % (8 * 1152))
    I("v_lshl_add_u32 v3, v2, 4, v3")
    I("v_add_u32 v4, 4608, v3")
    I("s_waitcnt lgkmcnt(0)")
    I("s_sub_u32 s12, s2, 128")
    I("s_cmp_ge_u32 s2, 128")
    I("s_cselect_b32 s10, s6, s4")
    I("s_cselect_b32 s11, s7, s5")
    I("s_cselect_b32 s12, s12, s2")
    I("s_mul_i32 s12, s12, %d" % (32 * 1152))
    I("s_add_u32 s10, s10, s12")
    I("s_addc_u32 s11, s11, 0")
    for i in range(8):
        I("global_load_dwordx4 v[%d:%d], v%d, s[10:11] offset:%d" % (32 + 4 * i, 35 + 4 * i, 3 if i < 4 else 4, (i & 3) * 1152))
    I("s_mov_b32 s26, %s" % f32bits(C_SCALE))
    I("s_cmp_ge_u32 s2, 128")
    I("s_cbranch_scc1 K3_mlp_coef")
    I("s_lshr_b32 s13, s2, 3")
    I("s_lshr_b32 s14, s2, 2")
    I("s_and_b32 s14, s14, 1")
    I("s_and_b32 s15, s2, 3")
    I("s_mul_i32 s16, s13, %d" % (NSPLIT * 2))
    I("s_add_u32 s16, s16, s14")
    PER = NSPLIT // 8
    NR = (NSPLIT + 63) // 64
    I("v_and_b32 v5, 31, v0")
    I("v_lshrrev_b32 v6, 5, v0")
    I("v_mul_u32_u24 v7, %d, v6" % (PER * 1024))
    I("v_lshl_add_u32 v7, v5, 2, v7")
    I("s_lshl_b32 s17, s16, 9")
    I("s_lshl_b32 s18, s15, 7")
    I("s_add_u32 s17, s17, s18")
    I("s_add_u32 s17, s17, %d" % WS_PO)
    I("v_add_u32 v7, s17, v7")
    I("v_cmp_gt_u32 vcc, 256, v0")
    I("s_and_saveexec_b64 s[20:21], vcc")
    I("s_cbranch_execz K3_skip_p2load")
    for i in range(PER):
        I("global_load_dword v%d, v7, s[8:9] offset:%d" % (64 + i, (i & 3) * 1024))
        if (i & 3) == 3 and i != PER - 1:
            I("v_add_u32 v7, 4096, v7")
    L("K3_skip_p2load")
    I("s_mov_b64 exec, s[20:21]")
    I("v_lshrrev_b32 v8, 6, v0")
    I("s_nop 0")
    I("v_readfirstlane_b32 s19, v8")
    I("s_cmp_lg_u32 s19, 0")
    I("s_cbranch_scc1 K3_p1_done")
    I("v_lshlrev_b32 v8, 4, v0")
    I("s_lshl_b32 s17, s16, 3")
    I("s_add_u32 s17, s17, %d" % WS_PML)
    I("v_add_u32 v8, s17, v8")
    if NSPLIT < 64:
        I("v_mov_b32 v10, %s" % f32bits(-1e30))
        I("v_mov_b32 v11, 0")
        I("v_cmp_gt_u32 vcc, %d, v0" % NSPLIT)
        I("s_and_saveexec_b64 s[22:23], vcc")
    for r in range(NR):
        I("global_load_dwordx2 v[%d:%d], v8, s[8:9] offset:%d" % (10 + 2 * r, 11 + 2 * r, r * 1024))
    if NSPLIT < 64:
        I("s_mov_b64 exec, s[22:23]")
    I("s_waitcnt vmcnt(0)")
    I("v_mov_b32 v20, v10")
    for r in range(1, NR):
        I("v_max_f32 v20, v20, v%d" % (10 + 2 * r))
    nop(2)
    row_allreduce("max", [20])
    nop(1)
    for j in range(4):
        I("v_readlane_b32 s%d, v20, %d" % (28 + j, 16 * j))
    nop(2)
    I("v_mov_b32 v20, s28")
    I("v_max_f32 v20, s29, v20")
    I("v_max_f32 v20, s30, v20")
    I("v_max_f32 v20, s31, v20")
    for r in range(NR):
        I("v_sub_f32 v%d, v%d, v20" % (24 + r, 10 + 2 * r))
        I("v_mul_f32 v%d, s26, v%d" % (24 + r, 24 + r))
        I("v_exp_f32 v%d, v%d" % (24 + r, 24 + r))
        nop(1)
    I("v_mul_f32 v21, v24, v11")
    for r in range(1, NR):
        I("v_fmac_f32 v21, v%d, v%d" % (24 + r, 11 + 2 * r))
    nop(2)
    row_allreduce("add", [21])
    nop(1)
    for j in range(4):
        I("v_readlane_b32 s%d, v21, %d" % (28 + j, 16 * j))
    nop(2)
    I("v_mov_b32 v21, s28")
    I("v_add_f32 v21, s29, v21")
    I("v_add_f32 v21, s30, v21")
    I("v_add_f32 v21, s31, v21")
    I("v_rcp_f32 v21, v21")
    nop(1)
    I("v_lshlrev_b32 v8, 2, v0")
    for r in range(NR):
        I("v_mul_f32 v%d, v%d, v21" % (24 + r, 24 + r))
        I("ds_write_b32 v8, v%d offset:%d" % (24 + r, 128 + r * 256))
    L("K3_p1_done")
    I("s_waitcnt vmcnt(0) lgkmcnt(0)")
    I("s_barrier")
    I("v_mul_u32_u24 v8, %d, v6" % (PER * 4))
    for i in range(PER):
        I("ds_read_b32 v%d, v8 offset:%d" % (80 + i, 128 + 4 * i))
    I("s_waitcnt lgkmcnt(0)")
    I("v_mul_f32 v20, v80, v64")
    for i in range(1, PER):
        I("v_fmac_f32 v20, v%d, v%d" % (80 + i, 64 + i))
    I("v_lshlrev_b32 v8, 2, v0")
    I("v_cmp_gt_u32 vcc, 256, v0")
    I("s_and_saveexec_b64 s[20:21], vcc")
    I("ds_write_b32 v8, v20 offset:1024")
    I("s_mov_b64 exec, s[20:21]")
    I("s_waitcnt lgkmcnt(0)")
    I("s_barrier")
    I("v_cmp_gt_u32 vcc, 32, v0")
    I("s_and_saveexec_b64 s[20:21], vcc")
    I("s_cbranch_execz K3_coef_done")
    for g in range(8):
        I("ds_read_b32 v%d, v8 offset:%d" % (12 + g, 1024 + g * 128))
    I("s_waitcnt lgkmcnt(0)")
    for g in range(1, 8):
        I("v_add_f32 v12, v12, v%d" % (12 + g))
    I("v_cvt_pk_bf16_f32 v12, v12, v12")
    I("v_lshlrev_b32 v12, 16, v12")
    I("ds_write_b32 v8, v12")
    I("s_branch K3_coef_done")
    L("K3_mlp_coef")
    I("v_cmp_gt_u32 vcc, 32, v0")
    I("s_and_saveexec_b64 s[20:21], vcc")
    I("s_cbranch_execz K3_coef_done")
    I("s_sub_u32 s13, s2, 128")
    I("s_lshl_b32 s13, s13, 7")
    I("s_add_u32 s13, s13, %d" % WS_H)
    I("v_lshlrev_b32 v8, 2, v0")
    I("v_add_u32 v9, s13, v8")
    I("global_load_dword v12, v9, s[8:9]")
    I("s_waitcnt vmcnt(0)")
    I("ds_write_b32 v8, v12")
    L("K3_coef_done")
    I("s_mov_b64 exec, s[20:21]")
    I("s_waitcnt vmcnt(0) lgkmcnt(0)")
    I("s_barrier")
    I("v_lshlrev_b32 v8, 5, v1")
    I("ds_read_b128 v[12:15], v8")
    I("ds_read_b128 v[16:19], v8 offset:16")
    for j in range(8):
        I("v_mov_b32 v%d, 0" % (20 + j))
    I("s_waitcnt lgkmcnt(0)")
    for i in range(8):
        for k in range(4):
            w = 32 + 4 * i + k
            I("v_lshlrev_b32 v28, 16, v%d" % w)
            I("v_and_b32 v29, 0xffff0000, v%d" % w)
            I("v_fmac_f32 v%d, v%d, v28" % (20 + 2 * k, 12 + i))
            I("v_fmac_f32 v%d, v%d, v29" % (21 + 2 * k, 12 + i))
    I("v_mul_u32_u24 v8, 2304, v1")
    I("v_lshl_add_u32 v8, v2, 5, v8")
    I("ds_write_b128 v8, v[20:23] offset:2048")
    I("ds_write_b128 v8, v[24:27] offset:2064")
    I("s_waitcnt lgkmcnt(0)")
    I("s_barrier")
    I("v_lshlrev_b32 v8, 3, v0")
    for g in range(4):
        I("ds_read_b64 v[%d:%d], v8 offset:%d" % (12 + 2 * g, 13 + 2 * g, 2048 + g * 2304))
    I("s_waitcnt lgkmcnt(0)")
    for g in range(1, 4):
        I("v_add_f32 v12, v12, v%d" % (12 + 2 * g))
        I("v_add_f32 v13, v13, v%d" % (13 + 2 * g))
    I("s_mul_i32 s13, s2, 2304")
    I("s_add_u32 s13, s13, %d" % WS_P3)
    I("v_add_u32 v8, s13, v8")
    I("global_store_dwordx2 v8, v[12:13], s[8:9]")
    L("K3_exit")
    I("s_endpgm")
    emit()

def gen_k4():
    name = "fin_kernel"
    kernel_head(name)
    I("s_cmp_ge_u32 s2, 9")
    I("s_cbranch_scc1 K4_exit")
    I("s_load_dwordx2 s[4:5], s[0:1], 0")
    I("s_load_dwordx2 s[6:7], s[0:1], 72")
    I("s_load_dwordx2 s[8:9], s[0:1], 88")
    I("v_and_b32 v1, 63, v0")
    I("v_lshrrev_b32 v2, 6, v0")
    I("s_lshl_b32 s10, s2, 8")
    I("s_add_u32 s10, s10, %d" % WS_P3)
    I("v_lshlrev_b32 v3, 2, v1")
    I("v_add_u32 v3, s10, v3")
    I("v_mul_u32_u24 v4, %d, v2" % (32 * 2304))
    I("v_mul_u32_u24 v5, %d, v2" % (36 * 2304))
    I("v_add_u32 v4, v4, v3")
    I("v_add_u32 v5, v5, v3")
    I("v_add_u32 v5, %d, v5" % (128 * 2304))
    I("s_waitcnt lgkmcnt(0)")
    for i in range(32):
        I("global_load_dword v%d, v4, s[8:9]" % (16 + i))
        I("v_add_u32 v4, 2304, v4")
    for i in range(36):
        I("global_load_dword v%d, v5, s[8:9]" % (48 + i))
        I("v_add_u32 v5, 2304, v5")
    I("s_waitcnt vmcnt(36)")
    for i in range(1, 32):
        I("v_add_f32 v16, v16, v%d" % (16 + i))
    I("s_waitcnt vmcnt(0)")
    for i in range(1, 36):
        I("v_add_f32 v48, v48, v%d" % (48 + i))
    I("v_lshlrev_b32 v6, 2, v0")
    I("ds_write_b32 v6, v16")
    I("ds_write_b32 v6, v48 offset:1024")
    I("s_waitcnt lgkmcnt(0)")
    I("s_barrier")
    I("v_cmp_gt_u32 vcc, 64, v0")
    I("s_and_saveexec_b64 s[20:21], vcc")
    I("s_cbranch_execz K4_exit")
    for g in range(4):
        I("ds_read_b32 v%d, v6 offset:%d" % (8 + g, g * 256))
        I("ds_read_b32 v%d, v6 offset:%d" % (12 + g, 1024 + g * 256))
    I("s_lshl_b32 s10, s2, 7")
    I("v_lshlrev_b32 v7, 1, v1")
    I("v_add_u32 v7, s10, v7")
    I("global_load_ushort v16, v7, s[4:5]")
    I("s_waitcnt lgkmcnt(0)")
    I("v_add_f32 v8, v8, v9")
    I("v_add_f32 v10, v10, v11")
    I("v_add_f32 v8, v8, v10")
    I("v_add_f32 v12, v12, v13")
    I("v_add_f32 v14, v14, v15")
    I("v_add_f32 v12, v12, v14")
    I("v_cvt_pk_bf16_f32 v9, v8, v12")
    I("v_lshlrev_b32 v8, 16, v9")
    I("v_and_b32 v12, 0xffff0000, v9")
    I("v_mul_f32 v13, %s, v12" % f32bits(-1.4426950408889634))
    I("v_exp_f32 v13, v13")
    nop(1)
    I("v_add_f32 v13, 1.0, v13")
    I("v_rcp_f32 v13, v13")
    nop(1)
    I("v_mul_f32 v13, v12, v13")
    I("v_cvt_pk_bf16_f32 v13, v13, v13")
    I("v_lshlrev_b32 v13, 16, v13")
    I("v_mul_f32 v13, v8, v13")
    I("v_cvt_pk_bf16_f32 v13, v13, v13")
    I("v_lshlrev_b32 v13, 16, v13")
    I("s_waitcnt vmcnt(0)")
    I("v_lshlrev_b32 v16, 16, v16")
    I("v_add_f32 v13, v16, v13")
    I("v_cvt_pk_bf16_f32 v13, v13, v13")
    I("global_store_short v7, v13, s[6:7]")
    L("K4_exit")
    I("s_endpgm")
    emit()

def main():
    emit(HEADER.rstrip("\n"))
    emit('.amdgcn_target "amdgcn-amd-amdhsa--gfx950"')
    emit(".text")
    gen_k1()
    gen_k2()
    gen_k3()
    gen_k4()
    emit('.section .rodata,"a"')
    emit(".p2align 6")
    kernel_desc("proj_kernel", 128)
    kernel_desc("attn_kernel", 128)
    kernel_desc("out_kernel", 96)
    kernel_desc("fin_kernel", 84)
    txt = "\n".join(x for x in out if x is not None) + "\n"
    path = sys.argv[1] if len(sys.argv) > 1 else "recurrent_scan__gqa_block_cached__glu_gated_geglu__decode.s"
    open(path, "w").write(txt)
    print("wrote", path, len(txt), "bytes")

main()
```
